```python
import torch

def _softmax(x, axis=-1):
    return torch.softmax(x, dim=axis)
def _gelu(x):
    return torch.nn.functional.gelu(x, approximate="tanh")
def _silu(x):
    return torch.nn.functional.silu(x)
def _sigmoid(x):
    return torch.sigmoid(x)
def _layernorm(x, axis=-1, eps=1e-5):
    m = x.mean(dim=axis, keepdim=True)
    v = x.var(dim=axis, keepdim=True, unbiased=False)
    return (x - m) / torch.sqrt(v + eps)
def _scatter_add(tgt, idx, src, axis=0):
    return tgt.clone().index_add_(axis, idx, src)
def _segment_sum(src, seg, n):
    out = torch.zeros((n,) + src.shape[1:], dtype=src.dtype)
    return out.index_add_(0, seg, src)
def _pad(x, pw):
    flat = tuple(v for pair in reversed(pw) for v in pair)
    return torch.nn.functional.pad(x, flat)

kernel_name = 'parallel_sum__mha_block__mixer_token_mlp__prompt'

def setup_inputs():

    _w = (lambda a: (lambda t: t.to(torch.bfloat16) if t.is_floating_point() else t)(torch.as_tensor(a)))
    def _A_setup():
        B, S, D, H = 1, 2048, 640, 32
        return {
            "x": _w((lambda *s: torch.randn(*s, dtype=torch.bfloat16) * 0.05)(B, S, D)),
            "wqkv": _w((lambda *s: torch.randn(*s, dtype=torch.bfloat16) * 0.05)(D, 3 * D)),
            "wo": _w((lambda *s: torch.randn(*s, dtype=torch.bfloat16) * 0.05)(D, D)),
        }
    _A_in = _A_setup()

    def _B_setup():
        B, S, D, F = 1, 2048, 640, 1728
        return {
            "x": _w((lambda *s: torch.randn(*s, dtype=torch.bfloat16) * 0.05)(B, S, D)),
            "w1": _w((lambda *s: torch.randn(*s, dtype=torch.bfloat16) * 1.6)(S, F) * (S ** -0.5)),
            "b1": _w((lambda *s: torch.randn(*s, dtype=torch.bfloat16) * 12.8)(F) * 0.02),
            "w2": _w((lambda *s: torch.randn(*s, dtype=torch.bfloat16) * 0.8)(F, S) * (F ** -0.5)),
            "b2": _w((lambda *s: torch.randn(*s, dtype=torch.bfloat16) * 12.8)(S) * 0.02),
        }
    _B_in = _B_setup()

    return {
        "A_x": _A_in["x"],
        "A_wqkv": _A_in["wqkv"],
        "A_wo": _A_in["wo"],
        "B_x": _B_in["x"],
        "B_w1": _B_in["w1"],
        "B_b1": _B_in["b1"],
        "B_w2": _B_in["w2"],
        "B_b2": _B_in["b2"],
    }

def reference(A_x, A_wqkv, A_wo, B_x, B_w1, B_b1, B_w2, B_b2):
    def _A_ref(x, wqkv, wo):
        B, S, D = x.shape
        H = 32
        Dh = D // H
        qkv = (lambda x, *d: x.permute(*d))((x @ wqkv).reshape(B, S, 3, H, Dh), 2, 0, 3, 1, 4)
        q, k, v = qkv[0], qkv[1], qkv[2]
        scores = torch.einsum("bhqd,bhkd->bhqk", q, k) * (Dh ** -0.5)
        p = _softmax(scores, axis=-1)
        o = torch.einsum("bhqk,bhkd->bhqd", p, v)
        return (lambda x, *d: x.permute(*d))(o, 0, 2, 1, 3).reshape(B, S, D) @ wo

    def _B_ref(x, w1, b1, w2, b2):
        B, S, D = x.shape
        h = _layernorm(x, axis=-1)
        u = torch.einsum("bsd,sf->bdf", h, w1) + b1
        u = _gelu(u)
        y = torch.einsum("bdf,fs->bds", u, w2) + b2
        return (lambda x, *d: x.permute(*d))(y, 0, 2, 1)

    x = A_x
    xn = _layernorm(x, axis=-1)
    return x + _A_ref(xn, A_wqkv, A_wo) + _B_ref(xn, B_w1, B_b1, B_w2, B_b2)
```

```python
import os
INSTR = int(os.environ.get('INSTR', '0'))
ST_BASE = 70
class Kern:
    def __init__(self, name):
        self.name = name
        self.lines = []
        self.vmax = 0
        self.smax = 0
        self._lab = 0
    def __call__(self, s):
        for ln in s.strip("\n").split("\n"):
            ln = ln.strip()
            if not ln:
                continue
            if ln.endswith(":") or ln.startswith("."):
                self.lines.append(ln)
            else:
                self.lines.append("    " + ln)
    def stamp(self, i, real=False):
        if INSTR:
            self(f"s_mem{'real' if real else ''}time s[{ST_BASE+2*i}:{ST_BASE+2*i+1}]")
    def dump(self, sWs, sWave, kid, n=14, sid=2):
        if not INSTR: return
        self("s_waitcnt vmcnt(0) lgkmcnt(0)")
        self(f"s_memtime s[{ST_BASE+2*(n-2)}:{ST_BASE+2*(n-2)+1}]")
        self(f"s_memrealtime s[{ST_BASE+2*(n-1)}:{ST_BASE+2*(n-1)+1}]")
        self("s_waitcnt lgkmcnt(0)")
        self("s_mov_b64 exec, -1")
        for i in range(16):
            self(f"v_mov_b32 v{4+i}, s{ST_BASE+2*i}" if i < n else f"v_mov_b32 v{4+i}, 0")
        self(f"s_add_u32 s64, s{sWs}, {0x1800000+kid*0x40000:#x}")
        self(f"s_addc_u32 s65, s{sWs+1}, 0")
        self("s_mov_b32 s66, 0x40000")
        self("s_mov_b32 s67, 0x20000")
        self(f"s_lshl_b32 s68, s{sid}, 4")
        self(f"s_add_u32 s68, s68, s{sWave}")
        self("s_lshl_b32 s68, s68, 6")
        self("v_mov_b32 v2, 0")
        for j in range(4):
            self(f"buffer_store_dwordx4 v[{4+4*j}:{7+4*j}], v2, s[64:67], s68 offen offset:{16*j}")
    def label(self, base):
        self._lab += 1
        return f"L_{self.name}_{base}_{self._lab}"
    def text(self):
        return (f".globl {self.name}\n.p2align 8\n.type {self.name},@function\n{self.name}:\n"
                + "\n".join(self.lines) + "\n")
    def desc(self, vgpr, sgpr=102, accum=None):
        if accum is None:
            accum = min(256, (vgpr + 3) // 4 * 4)
        return f""".p2align 6
.amdhsa_kernel {self.name}
  .amdhsa_next_free_vgpr {vgpr}
  .amdhsa_next_free_sgpr {sgpr}
  .amdhsa_accum_offset {accum}
  .amdhsa_group_segment_fixed_size 0
  .amdhsa_kernarg_size 88
  .amdhsa_user_sgpr_count 2
  .amdhsa_user_sgpr_kernarg_segment_ptr 1
  .amdhsa_system_sgpr_workgroup_id_x 1
.end_amdhsa_kernel
"""

def vr(a, n=1):
    return f"v{a}" if n == 1 else f"v[{a}:{a+n-1}]"
def sr(a, n=1):
    return f"s{a}" if n == 1 else f"s[{a}:{a+n-1}]"

class Alloc:
    def __init__(self, start, limit):
        self.p = start; self.limit = limit
    def __call__(self, n=1, align=1):
        if n >= 2 and align < 2: align = 2
        self.p = (self.p + align - 1) // align * align
        r = self.p; self.p += n
        assert self.p <= self.limit, f"out of registers {self.p} > {self.limit}"
        return r

def srd(k, dst, ptr, off, nbytes):
    if off:
        k(f"s_add_u32 s{dst}, s{ptr}, {off:#x}")
        k(f"s_addc_u32 s{dst+1}, s{ptr+1}, 0")
    else:
        k(f"s_mov_b32 s{dst}, s{ptr}")
        k(f"s_mov_b32 s{dst+1}, s{ptr+1}")
    k(f"s_mov_b32 s{dst+2}, {nbytes:#x}")
    k(f"s_mov_b32 s{dst+3}, 0x20000")
```

```python
from asm import *
from layout import *
from qkv import pi31

SHARE = 6144
SLOT = 4 * SHARE
NSLOT = 3
RING = SLOT * NSLOT
NCH = 8
ATT_LDS = RING

def gen_attn(k, sWs, sId, sWave, lane, va, sa, prio=0):
    NB = 4
    sR = sa(4, 4); sO = sa(4, 4)
    O = [va(16, 4) for _ in range(NB)]
    Sb = [va(16, 4) for _ in range(4)]
    Qa = [va(4, 2) for _ in range(NB)]
    Qx = [va(2, 2) for _ in range(NB)]
    Ka = [va(4, 2) for _ in range(2)]
    Kb = [va(2, 2) for _ in range(2)]
    V0 = [va(4, 2) for _ in range(2)]
    V1 = [va(4, 2) for _ in range(2)]
    idx = va(); bK = va(); bKb = va(); bV = va(); aK = va(); aKb = va(); aV = va()
    gA = va(); gX = va(); dK = [va() for _ in range(3)]
    t0 = va(); t1 = va(); t2 = va(); t3 = va(); l31 = va(); hf = va()
    sHead = sa(); sKp = sa(); sT = sa(); sT2 = sa(); sSlot = sa(); sCnt = sa(); sPass = sa(); sQb = sa()
    sCa = sa(); sCb = sa(); sOdd = sa(); sGK = sa(); sGV = sa(); sDst = sa(); sMine = sa()
    sHi = sa(2, 2); sLo = sa(2, 2); sOk = sa(2, 2)
    if prio: k(f"s_setprio {prio}")
    k(f"""
    s_and_b32 s{sHead}, s{sId}, 7
    s_lshl_b32 s{sHead}, s{sHead}, 2
    s_lshr_b32 s{sT}, s{sId}, 6
    s_add_u32 s{sHead}, s{sHead}, s{sT}
    s_lshr_b32 s{sKp}, s{sWave}, 1
    s_and_b32 s{sOdd}, s{sHead}, 1
    s_lshr_b32 s{sT}, s{sHead}, 1
    s_mul_i32 s{sT}, s{sT}, {5*CH_S}
    s_mul_i32 s{sCa}, s{sOdd}, {3*CH_S}
    s_lshl_b32 s{sT2}, s{sOdd}, 3
    s_add_u32 s{sCb}, s{sT2}, {2*CH_S}
    v_and_b32 v{l31}, 31, v{lane}
    v_lshrrev_b32 v{hf}, 5, v{lane}
    v_lshlrev_b32 v{bK}, 4, v{lane}
    v_lshlrev_b32 v{t0}, 4, v{l31}
    v_lshl_add_u32 v{gA}, v{hf}, 15, v{t0}
    v_add_u32 v{gA}, s{sCa}, v{gA}
    v_add_u32 v{gX}, s{sCb}, v{t0}
    v_add_u32 v{dK[0]}, 2048, v{gA}
    v_add_u32 v{dK[1]}, {2048+512-1024}, v{gA}
    v_add_u32 v{dK[2]}, {2*CH_S}, v{bK}
    s_lshl_b32 s{sGK}, s{sWave}, 10
    s_add_u32 s{sGK}, s{sGK}, s{sT}
    s_add_u32 s{sGK}, s{sGK}, {K_OFF-2048}
    s_mul_i32 s{sGV}, s{sHead}, {V_HS}
    s_mul_i32 s{sT2}, s{sWave}, {2*VREC}
    s_add_u32 s{sGV}, s{sGV}, s{sT2}
    s_add_u32 s{sGV}, s{sGV}, {V_OFF}
    s_mul_i32 s{sMine}, s{sWave}, {SHARE}
    s_lshr_b32 s{sQb}, s{sId}, 3
    s_and_b32 s{sQb}, s{sQb}, 7
    s_lshl_b32 s{sQb}, s{sQb}, 12
    s_and_b32 s{sT2}, s{sWave}, 1
    s_lshl_b32 s{sT2}, s{sT2}, 11
    s_add_u32 s{sQb}, s{sQb}, s{sT2}
    s_add_u32 s{sQb}, s{sQb}, s{sT}
    s_lshl_b32 s{sT2}, s{sKp}, 10
    s_sub_u32 s{sCnt}, s{sQb}, s{sT2}
    s_add_u32 s{sCnt}, s{sCnt}, 1024
    s_add_u32 s{sQb}, s{sQb}, s{sT2}
    s_mov_b32 s{sCa}, s{sT}
    s_waitcnt lgkmcnt(0)
    """)
    srd(k, sR, sWs, 0, V_OFF + V_SZ)
    def dma(dst_off, const_dst):
        if const_dst: k(f"s_add_u32 m0, s{sMine}, {dst_off}")
        else: k(f"s_mov_b32 m0, s{sDst}")
        k(f"s_nop 0") if const_dst else None
        for j in range(3):
            k(f"buffer_load_dwordx4 v{dK[j]}, {sr(sR,4)}, s{sGK} offen offset:{j*1024} lds")
        if const_dst: k(f"s_add_u32 m0, s{sMine}, {dst_off+3072}")
        else: k(f"s_add_u32 m0, s{sDst}, 3072")
        k(f"s_add_u32 s{sGK}, s{sGK}, 4096")
        for j in range(3):
            k(f"buffer_load_dwordx4 v{bK}, {sr(sR,4)}, s{sGV} offen offset:{j*1024} lds")
        k(f"s_add_u32 s{sGV}, s{sGV}, {8*VREC}")
    dma(0, True)
    for b in range(NB):
        so = sQb if b < 2 else sCnt
        k(f"buffer_load_dwordx4 {vr(Qa[b],4)}, v{gA}, {sr(sR,4)}, s{so} offen offset:{(b&1)*512}")
        k(f"buffer_load_dwordx2 {vr(Qx[b],2)}, v{gX}, {sr(sR,4)}, s{so} offen offset:{(b&1)*512}")
    dma(SLOT, True)
    dma(2 * SLOT, True)
    srd(k, sO, sWs, O_OFF, O_SZ)
    k(f"""
    s_mov_b32 s{sHi}, 0
    s_mov_b32 s{sHi+1}, -1
    s_mov_b32 s{sLo}, -1
    s_mov_b32 s{sLo+1}, 0
    s_mov_b32 s{sPass}, 0
    s_lshl_b32 s{sT2}, s{sOdd}, 3
    s_add_u32 s{sT2}, s{sT2}, 2048
    v_add_u32 v{bKb}, s{sT2}, v{t0}
    """)
    pi31(k, t1, l31, t2)
    k(f"""
    s_lshl_b32 s{sT2}, s{sOdd}, 2
    v_add_u32 v{t2}, s{sT2}, v{t1}            ; n<16: d = n + 4*odd
    s_lshl_b32 s{sT2}, s{sOdd}, 4
    v_subrev_u32 v{t3}, s{sT2}, v{t1}         ; 16..19: d = n - 16*odd
    v_cmp_gt_u32 vcc, 16, v{t1}
    s_nop 1
    v_cndmask_b32 v{t2}, v{t3}, v{t2}, vcc
    v_cmp_eq_u32 vcc, 24, v{t1}
    s_nop 1
    v_cndmask_b32 v{t2}, v{t2}, 20, vcc
    v_cmp_gt_u32 {sr(sOk,2)}, 20, v{t1}
    s_nop 1
    s_or_b64 vcc, vcc, {sr(sOk,2)}
    v_lshlrev_b32 v{t2}, 4, v{t2}
    v_mul_u32_u24 v{t3}, 336, v{hf}
    v_add_u32 v{t2}, v{t2}, v{t3}
    v_mov_b32 v{t3}, 0x4000000
    v_cndmask_b32 v{bV}, v{t3}, v{t2}, vcc
    v_mov_b32 v{idx}, 0xdddddddd
    """)
    pK = va(); pKb = va(); pV = va(); zKb = va()
    k(f"""
    s_lshl_b32 s{sT}, s{sKp}, 10
    v_add_u32 v{pK}, s{sT}, v{bK}
    v_mov_b32 v{t3}, {3072+320}
    v_cndmask_b32 v{zKb}, v{bKb}, v{t3}, {sr(sHi,2)}
    s_lshl_b32 s{sT}, s{sKp}, 9
    v_add_u32 v{pKb}, s{sT}, v{bKb}
    v_cndmask_b32 v{pKb}, v{pKb}, v{t3}, {sr(sHi,2)}
    s_mul_i32 s{sT}, s{sKp}, {VREC}
    s_add_u32 s{sT}, s{sT}, 3072
    v_add_u32 v{pV}, s{sT}, v{bV}
    v_mov_b32 v{aK}, v{pK}
    v_mov_b32 v{aKb}, v{pKb}
    v_mov_b32 v{aV}, v{pV}
    s_mov_b32 s{sSlot}, 0
    """)
    for b in range(NB):
        for r in range(16):
            k(f"v_mov_b32 v{O[b]+r}, 0")
    for r in range(4):
        k(f"v_mov_b32 v{V0[1]+r}, 0")
        k(f"v_mov_b32 v{V1[1]+r}, 0")
    k("s_waitcnt vmcnt(12)")
    k("s_barrier")
    k(f"""
    ds_read_b128 {vr(Ka[1],4)}, v{bK}
    ds_read_b64 {vr(Kb[1],2)}, v{zKb}
    ds_read_b128 {vr(Ka[0],4)}, v{aK}
    ds_read_b64 {vr(Kb[0],2)}, v{aKb}
    ds_read_b128 {vr(V0[0],4)}, v{aV}
    ds_read_b128 {vr(V1[0],4)}, v{aV} offset:672
    """)
    for b in range(NB):
        k(f"v_cndmask_b32 v{Qx[b]}, v{Qx[b]}, 0, {sr(sHi,2)}")
        k(f"v_cndmask_b32 v{Qx[b]+1}, v{Qx[b]+1}, 0, {sr(sHi,2)}")
    k("s_waitcnt lgkmcnt(4)")
    def qk1(dst, ks, b): return f"v_mfma_f32_32x32x16_bf16 {vr(dst,16)}, {vr(Ka[ks],4)}, {vr(Qa[b],4)}, 0"
    def qk2(dst, ks, b): return f"v_mfma_f32_32x32x8_bf16 {vr(dst,16)}, {vr(Kb[ks],2)}, {vr(Qx[b],2)}, {vr(dst,16)}"
    def pv1(b, vs, s): return f"v_smfmac_f32_32x32x32_bf16 {vr(O[b],16)}, {vr(V0[vs],4)}, {vr(s,8)}, v{idx}"
    def pv2(b, vs, s): return f"v_smfmac_f32_32x32x32_bf16 {vr(O[b],16)}, {vr(V1[vs],4)}, {vr(s+8,8)}, v{idx}"
    for b in range(NB):
        k(qk1(Sb[b], 1, b)); k(qk2(Sb[b], 1, b))
    k("s_nop 7")
    for b in range(NB):
        s = Sb[b]
        k(f"v_max3_f32 v{t0}, v{s}, v{s+1}, v{s+2}")
        for j in range(3, 15, 2):
            k(f"v_max3_f32 v{t0}, v{t0}, v{s+j}, v{s+j+1}")
        k(f"v_max_f32 v{t0}, v{t0}, v{s+15}")
        k(f"v_xor_b32 v{t0}, 0x80000000, v{t0}")
        k(f"v_lshrrev_b32 v{t0}, 16, v{t0}")
        k(f"v_cndmask_b32 v{Qx[b]}, v{Qx[b]}, v{t0}, {sr(sHi,2)}")
        if b == 0:
            k("s_waitcnt lgkmcnt(0)")
            k(qk1(Sb[0], 0, 0)); k(qk2(Sb[0], 0, 0))
    for r in range(16):
        k(f"v_mov_b32 v{Sb[3]+r}, 0")
    k(f"s_mov_b32 s{sCnt}, {NCH}")
    k.stamp(2)
    k("s_nop 0")
    loop = k.label("loop")
    k(".p2align 6")
    k(f"{loop}:")
    NT = 4
    for u in range(NT * NB):
        i, b = divmod(u, NB)
        tn, bn = divmod(u + 1, NB)
        tp, bp = divmod(u - 1, NB)
        ms = [pv1(bp, tp % 2, Sb[(u - 1) % 4]), qk1(Sb[(u + 1) % 4], tn % 2, bn),
              qk2(Sb[(u + 1) % 4], tn % 2, bn), pv2(bp, tp % 2, Sb[(u - 1) % 4])]
        if i == NT - 1 and b == 0:
            skip = k.label("skip"); cont = k.label("cont")
            k(f"""
            s_add_u32 s{sDst}, s{sSlot}, s{sMine}
            s_add_u32 s{sSlot}, s{sSlot}, {SLOT}
            s_cmp_ge_u32 s{sSlot}, {RING}
            s_cselect_b32 s{sSlot}, 0, s{sSlot}
            v_add_u32 v{aK}, s{sSlot}, v{pK}
            v_add_u32 v{aKb}, s{sSlot}, v{pKb}
            v_add_u32 v{aV}, s{sSlot}, v{pV}
            s_cmp_le_u32 s{sCnt}, {NSLOT}
            s_waitcnt vmcnt(6)
            s_barrier
            s_cbranch_scc1 {skip}
            """)
            k(f"s_mov_b32 m0, s{sDst}")
            k(ms[0])
            for j in range(3):
                k(f"buffer_load_dwordx4 v{dK[j]}, {sr(sR,4)}, s{sGK} offen offset:{j*1024} lds")
            k(f"s_add_u32 m0, s{sDst}, 3072")
            k(f"s_add_u32 s{sGK}, s{sGK}, 4096")
            for j in range(3):
                k(f"buffer_load_dwordx4 v{bK}, {sr(sR,4)}, s{sGV} offen offset:{j*1024} lds")
            k(f"s_add_u32 s{sGV}, s{sGV}, {8*VREC}")
            k(f"{cont}:")
            ms[0] = None
            tail_skip = (skip, cont, pv1(bp, tp % 2, Sb[(u - 1) % 4]))
        off = ((i + 1) % NT) * SHARE
        ns = (i + 1) % 2
        if bn == 0:
            k("s_waitcnt lgkmcnt(0)")
        for q in range(4):
            if ms[q]: k(ms[q])
            if b == 0 and q == 0: k(f"ds_read_b128 {vr(Ka[ns],4)}, v{aK} offset:{off}")
            if b == 0 and q == 1: k(f"ds_read_b64 {vr(Kb[ns],2)}, v{aKb} offset:{off}")
            if b == 1 and q == 0: k(f"ds_read_b128 {vr(V0[ns],4)}, v{aV} offset:{off}")
            if b == 1 and q == 1: k(f"ds_read_b128 {vr(V1[ns],4)}, v{aV} offset:{off+672}")
            for j in range(4):
                r = Sb[u % 4] + q * 4 + j
                k(f"v_exp_f32 v{r}, v{r}")
    k(f"""
    s_sub_u32 s{sCnt}, s{sCnt}, 1
    s_cmp_lg_u32 s{sCnt}, 0
    s_cbranch_scc1 {loop}
    """)
    k.stamp(3)
    k(pv1(3, 1, Sb[3])); k(pv2(3, 1, Sb[3]))
    k(f"""
    s_xor_b32 s{sT2}, s{sWave}, 2
    s_mul_i32 s{sT2}, s{sT2}, {SHARE}
    v_add_u32 v{aK}, s{sMine}, v{bK}
    v_add_u32 v{aV}, s{sT2}, v{bK}
    """)
    for m in range(3):
        k(f"ds_write_b128 v{aK}, {vr(O[2]+4*m,4)} offset:{m*1024}")
    k("s_nop 7")
    for m in range(3):
        k(f"ds_write_b128 v{aK}, {vr(O[3]+4*m,4)} offset:{(3+m)*1024}")
    k("s_waitcnt lgkmcnt(0)")
    k("s_barrier")
    for b in range(2):
        for m in range(3):
            k(f"ds_read_b128 {vr(Sb[b]+4*m,4)}, v{aV} offset:{(b*3+m)*1024}")
    for b in range(2):
        k(f"s_waitcnt lgkmcnt({3-3*b})")
        for r in range(12):
            k(f"v_add_f32 v{O[b]+r}, v{O[b]+r}, v{Sb[b]+r}")
    fin = k.label("fin"); slow = k.label("slow")
    k(f"{fin}:")
    k(f"s_mov_b64 {sr(sOk,2)}, -1")
    k(f"s_mov_b32 s{sT2}, 0x7f7fffff")
    for b in range(2):
        o = O[b]
        k(f"""
        v_mov_b32 v{t0}, v{o+8}
        v_mov_b32 v{t1}, v{o+8}
        v_add_f32 v{t3}, abs(v{o}), abs(v{o+1})
        v_add_f32 v{t3}, v{t3}, abs(v{o+2})
        v_permlane32_swap_b32 v{t0}, v{t1}
        """)
        for r in range(3, 12):
            k(f"v_add_f32 v{t3}, v{t3}, abs(v{o+r})")
        k(f"""
        v_rcp_f32 v{t2}, v{t1}
        v_cmp_ge_f32 vcc, s{sT2}, v{t3}
        s_and_b64 {sr(sOk,2)}, {sr(sOk,2)}, vcc
        v_cmp_le_f32 vcc, 0x2b800000, v{t1}
        s_and_b64 {sr(sOk,2)}, {sr(sOk,2)}, vcc
        v_cmp_ge_f32 vcc, 0x67800000, v{t1}
        s_and_b64 {sr(sOk,2)}, {sr(sOk,2)}, vcc
        """)
        for r in range(12):
            k(f"v_mul_f32 v{o+r}, v{o+r}, v{t2}")
        for e in range(6):
            k(f"v_cvt_pk_bf16_f32 v{Sb[2]+b*8+e}, v{o+2*e}, v{o+2*e+1}")
    k(f"""
    s_cmp_eq_u64 {sr(sOk,2)}, -1
    s_cselect_b32 s{sT}, 1, 0
    s_or_b32 s{sT}, s{sT}, s{sPass}
    s_cmp_eq_u32 s{sT}, 0
    s_cbranch_scc1 {slow}
    """)
    for b in range(2):
        k(f"buffer_store_dwordx4 {vr(Sb[2]+b*8,4)}, v{gA}, {sr(sO,4)}, s{sQb} offen offset:{b*512}")
    k(f"s_mov_b64 exec, {sr(sLo,2)}")
    for b in range(2):
        k(f"buffer_store_dwordx2 {vr(Sb[2]+b*8+4,2)}, v{gX}, {sr(sO,4)}, s{sQb} offen offset:{b*512}")
    k.stamp(4)
    k.dump(sWs, sWave, 1, sid=sId)
    k("s_endpgm")
    k(f"{tail_skip[0]}:")
    k(tail_skip[2])
    k("s_waitcnt vmcnt(0)")
    k(f"s_branch {tail_skip[1]}")
    k(f"{slow}:")
    mx = [t2, t3]
    l1 = k.label("mx"); l2 = k.label("re")
    k(f"""
    s_mov_b32 s{sPass}, 1
    s_add_u32 s{sCa}, s{sCa}, {K_OFF}
    s_mov_b32 s{sT}, s{sCa}
    s_mov_b32 s{sCnt}, 64
    v_mov_b32 v{mx[0]}, 0xff800000
    v_mov_b32 v{mx[1]}, 0xff800000
    """)
    for b in range(2):
        k(f"v_cndmask_b32 v{Qx[b]}, v{Qx[b]}, 0, {sr(sHi,2)}")
    def kload():
        k(f"""
        buffer_load_dwordx4 {vr(Ka[0],4)}, v{gA}, {sr(sR,4)}, s{sT} offen
        buffer_load_dwordx2 {vr(Kb[0],2)}, v{gX}, {sr(sR,4)}, s{sT} offen
        """)
    def kfix():
        k(f"""
        s_waitcnt vmcnt(0)
        v_mov_b32 v{t0}, 0x3f803f80
        v_cndmask_b32 v{Kb[0]}, v{Kb[0]}, v{t0}, {sr(sHi,2)}
        v_cndmask_b32 v{Kb[0]+1}, v{Kb[0]+1}, v{t0}, {sr(sHi,2)}
        s_nop 1
        """)
    k(f"{l1}:")
    kload(); kfix()
    for b in range(2):
        k(qk1(Sb[b], 0, b)); k(qk2(Sb[b], 0, b))
    k("s_nop 15")
    for b in range(2):
        for j in range(0, 16, 2):
            k(f"v_max3_f32 v{mx[b]}, v{mx[b]}, v{Sb[b]+j}, v{Sb[b]+j+1}")
    k(f"""
    s_add_u32 s{sT}, s{sT}, 512
    s_sub_u32 s{sCnt}, s{sCnt}, 1
    s_cmp_lg_u32 s{sCnt}, 0
    s_cbranch_scc1 {l1}
    """)
    for b in range(2):
        m = mx[b]
        k(f"""
        v_mov_b32 v{t0}, v{m}
        v_mov_b32 v{t1}, v{m}
        s_nop 1
        v_permlane32_swap_b32 v{t0}, v{t1}
        s_nop 1
        v_max_f32 v{m}, v{t0}, v{t1}
        v_xor_b32 v{m}, 0x80000000, v{m}
        v_and_b32 v{t0}, 0xffff0000, v{m}
        v_sub_f32 v{m}, v{m}, v{t0}
        v_and_b32 v{t1}, 0xffff0000, v{m}
        v_sub_f32 v{m}, v{m}, v{t1}
        v_lshrrev_b32 v{t0}, 16, v{t0}
        v_or_b32 v{t0}, v{t0}, v{t1}
        v_lshrrev_b32 v{m}, 16, v{m}
        v_cndmask_b32 v{Qx[b]}, v{Qx[b]}, v{t0}, {sr(sHi,2)}
        v_cndmask_b32 v{Qx[b]+1}, v{Qx[b]+1}, v{m}, {sr(sHi,2)}
        """)
        for r in range(16):
            k(f"v_mov_b32 v{O[b]+r}, 0")
    k(f"""
    s_mov_b32 s{sT}, s{sCa}
    s_mul_i32 s{sGV}, s{sHead}, {V_HS}
    s_add_u32 s{sGV}, s{sGV}, {V_OFF}
    s_mov_b32 s{sCnt}, 64
    """)
    k(f"{l2}:")
    kload()
    k(f"""
    buffer_load_dwordx4 {vr(V0[0],4)}, v{bV}, {sr(sR,4)}, s{sGV} offen
    buffer_load_dwordx4 {vr(V1[0],4)}, v{bV}, {sr(sR,4)}, s{sGV} offen offset:672
    """)
    kfix()
    for b in range(2):
        k(qk1(Sb[b], 0, b)); k(qk2(Sb[b], 0, b))
    k("s_nop 15")
    for b in range(2):
        for j in range(16):
            k(f"v_exp_f32 v{Sb[b]+j}, v{Sb[b]+j}")
    k("s_nop 1")
    for b in range(2):
        k(pv1(b, 0, Sb[b])); k(pv2(b, 0, Sb[b]))
    k(f"""
    s_add_u32 s{sT}, s{sT}, 512
    s_add_u32 s{sGV}, s{sGV}, {VREC}
    s_sub_u32 s{sCnt}, s{sCnt}, 1
    s_cmp_lg_u32 s{sCnt}, 0
    s_nop 7
    s_cbranch_scc1 {l2}
    s_nop 15
    s_branch {fin}
    """)

def gen_attn_only():
    k = Kern("attn_kernel")
    va = Alloc(1, 256); sa = Alloc(8, 64)
    lane = va(); sWave = sa()
    end = k.label("end")
    k.stamp(0); k.stamp(1, True)
    k(f"""
    s_cmp_ge_u32 s2, 256
    s_cbranch_scc1 {end}
    s_load_dwordx2 s[4:5], s[0:1], {KA_WS}
    v_lshrrev_b32 v{lane}, 6, v0
    s_nop 0
    v_readfirstlane_b32 s{sWave}, v{lane}
    v_and_b32 v{lane}, 63, v0
    """)
    gen_attn(k, 4, 2, sWave, lane, va, sa)
    k(f"{end}:")
    k("s_endpgm")
    return k, va.p

if __name__ == "__main__":
    k, vt = gen_attn_only()
    print(f"; @launch kernel=attn_kernel grid=(256,1,1) block=(256,1,1) lds={ATT_LDS}")
    print('.amdgcn_target "amdgcn-amd-amdhsa--gfx950"\n.text')
    print(k.text())
    print('.section .rodata,"a"')
    print(k.desc(vt))
```

```python
S, D, H, DH, F = 2048, 640, 32, 20, 1728
KA_X, KA_WQKV, KA_WO, KA_BX, KA_W1, KA_B1, KA_W2, KA_B2, KA_OUT, KA_DBG, KA_WS = [8 * i for i in range(11)]
CH_S = S * 16
CH_D = D * 16
VREC = 1344
V_HS = 64 * VREC
Q_OFF, Q_SZ = 0x000000, 80 * CH_S
K_OFF, K_SZ = 0x280000, 80 * CH_S
V_OFF, V_SZ = 0x500000, 32 * V_HS
HT_OFF, HT_SZ = 0x7A0000, 256 * CH_D
U_OFF, U_SZ = 0xA20000, 216 * CH_D
O_OFF, O_SZ = 0xC40000, 80 * CH_S
Y_OFF, Y_SZ = 0xEC0000, S * D * 4
assert Q_OFF + Q_SZ <= K_OFF and K_OFF + K_SZ <= V_OFF and V_OFF + V_SZ <= HT_OFF
assert HT_OFF + HT_SZ <= U_OFF and U_OFF + U_SZ <= O_OFF and O_OFF + O_SZ <= Y_OFF
```

```python
from asm import *
from layout import *
from qkv import f32
import math

WREG = 20480
MLP_LDS = 4 * WREG
OOB = 0x7f000000

class GemmRegs:
    def __init__(self, va, sa, DEPTH):
        self.D = DEPTH
        self.acc = [[va(4, 4) for _ in range(5)] for _ in range(4)]
        self.W = [va(4, 2) for _ in range(4)]
        self.C = [[va(4, 2) for _ in range(5)] for _ in range(DEPTH)]
        self.aW = [va() for _ in range(4)]
        self.oT = [va() for _ in range(4)]
        self.oC = va()
        self.t = [va() for _ in range(8)]
        self.l16 = va()
        self.sT = sa(); self.sT2 = sa(); self.sTo = sa(); self.sCo = sa(); self.sTb = sa(); self.sCb = sa()
        self.sIt = sa(); self.sLeft = sa(); self.sCnt = sa(); self.sM = sa()

def gemm_setup(k, g, lane, sWave):
    t = g.t
    k(f"""
    s_mul_i32 s{g.sM}, s{sWave}, {WREG}
    v_lshlrev_b32 v{g.l16}, 4, v{lane}
    v_lshrrev_b32 v{t[0]}, 4, v{lane}        ; g
    v_bfe_u32 v{t[1]}, v{lane}, 2, 2         ; r
    v_lshl_add_u32 v{t[2]}, v{t[0]}, 3, v{t[1]}
    v_lshlrev_b32 v{t[2]}, 7, v{t[2]}
    v_bfe_u32 v{t[1]}, v{lane}, 3, 2
    v_xor_b32 v{t[1]}, s{sWave}, v{t[1]}
    v_lshl_add_u32 v{t[2]}, v{t[1]}, 5, v{t[2]}
    v_and_b32 v{t[1]}, 3, v{lane}
    v_lshl_add_u32 v{t[2]}, v{t[1]}, 3, v{t[2]}
    v_add_u32 v{g.aW[0]}, s{g.sM}, v{t[2]}
    v_xor_b32 v{g.aW[1]}, 32, v{g.aW[0]}
    v_xor_b32 v{g.aW[2]}, 64, v{g.aW[0]}
    v_xor_b32 v{g.aW[3]}, 0x60, v{g.aW[0]}
    v_mul_u32_u24 v{g.oC}, {CH_D}, v{t[0]}
    v_and_b32 v{t[1]}, 15, v{lane}
    v_lshl_add_u32 v{g.oC}, v{t[1]}, 4, v{g.oC}
    """)

def gemm_main(k, g, lane, sWave, sTs, sCs, RS, NIT, sTile, sDt, sRot, swap):
    t = g.t; D = g.D
    k(f"""
    v_lshrrev_b32 v{t[0]}, 3, v{lane}
    v_mul_u32_u24 v{t[0]}, {RS}, v{t[0]}
    v_bfe_u32 v{t[1]}, v{lane}, 4, 1
    v_lshlrev_b32 v{t[1]}, 1, v{t[1]}
    v_and_b32 v{t[2]}, 7, v{lane}
    v_xor_b32 v{t[1]}, v{t[1]}, v{t[2]}
    """)
    for a in range(4):
        k(f"v_xor_b32 v{t[2]}, {4*(a&1)}, v{t[1]}")
        k(f"v_lshl_add_u32 v{g.oT[a]}, v{t[2]}, 4, v{t[0]}")
        if a: k(f"v_add_u32 v{g.oT[a]}, {a*(8*RS-1024)}, v{g.oT[a]}")
    k(f"""
    s_mul_i32 s{g.sTb}, s{sWave}, {32*RS}
    s_lshl_b32 s{g.sT}, s{sTile}, 7
    s_add_u32 s{g.sTb}, s{g.sTb}, s{g.sT}
    s_mul_i32 s{g.sCb}, s{sWave}, {4*CH_D}
    s_mul_i32 s{g.sT}, s{sDt}, 1280
    s_add_u32 s{g.sCb}, s{g.sCb}, s{g.sT}
    s_mov_b32 s{g.sIt}, s{sRot}
    s_mov_b32 s{g.sLeft}, {NIT}
    s_mov_b32 s{g.sCnt}, {NIT}
    """)
    def addr():
        return [f"s_mul_i32 s{g.sTo}, s{g.sIt}, {128*RS}",
                f"s_mul_i32 s{g.sCo}, s{g.sIt}, {16*CH_D}",
                f"s_add_u32 s{g.sTo}, s{g.sTo}, s{g.sTb}",
                f"s_add_u32 s{g.sCo}, s{g.sCo}, s{g.sCb}",
                f"s_add_u32 s{g.sIt}, s{g.sIt}, 1",
                f"s_cmp_eq_u32 s{g.sIt}, {NIT}",
                f"s_cselect_b32 s{g.sIt}, 0, s{g.sIt}",
                f"s_sub_i32 s{g.sLeft}, s{g.sLeft}, 1",
                f"s_cmp_lt_i32 s{g.sLeft}, 0",
                f"s_cselect_b32 s{g.sTo}, {OOB:#x}, s{g.sTo}",
                f"s_cselect_b32 s{g.sCo}, {OOB:#x}, s{g.sCo}"]
    def loads(p):
        ls = [f"buffer_load_dwordx4 v{g.oT[a]}, {sr(sTs,4)}, s{g.sTo} offen offset:{a*1024} lds" for a in range(4)]
        ls += [f"buffer_load_dwordx4 {vr(g.C[p][db],4)}, v{g.oC}, {sr(sCs,4)}, s{g.sCo} offen offset:{db*256}" for db in range(5)]
        return ls
    for p in range(D - 1):
        k(f"s_add_u32 m0, s{g.sM}, {p*4096}")
        for s in addr(): k(s)
        for s in loads(p): k(s)
    for j in range(4):
        for db in range(5):
            for r in range(4):
                k(f"v_mov_b32 v{g.acc[j][db]+r}, 0")
    lp = k.label("gl"); done = k.label("gd")
    k(".p2align 6")
    k(f"{lp}:")
    for p in range(D):
        pn = (p - 1) % D
        k(f"s_add_u32 m0, s{g.sM}, {pn*4096}")
        for s in addr(): k(s)
        k(f"s_waitcnt vmcnt({9*(D-2)})")
        for j in range(4):
            k(f"ds_read_b64_tr_b16 {vr(g.W[j],2)}, v{g.aW[j]} offset:{p*4096}")
            k(f"ds_read_b64_tr_b16 {vr(g.W[j]+2,2)}, v{g.aW[j]} offset:{p*4096+512}")
        ls = loads(pn)
        for _ in range(3): k(ls.pop(0))
        n = 0
        for j in range(4):
            k(f"s_waitcnt lgkmcnt({6-2*j})")
            for db in range(5):
                a, b = (g.C[p][db], g.W[j]) if swap else (g.W[j], g.C[p][db])
                k(f"v_mfma_f32_16x16x32_bf16 {vr(g.acc[j][db],4)}, {vr(a,4)}, {vr(b,4)}, {vr(g.acc[j][db],4)}")
                n += 1
                if n % 3 == 0 and ls: k(ls.pop(0))
        assert not ls
        if p == D - 1 or (NIT % D and p == NIT % D - 1):
            k(f"s_sub_u32 s{g.sCnt}, s{g.sCnt}, {D - (NIT % D) if (p == D - 1 and NIT % D) else (p + 1 if p != D - 1 else D)}")
            k(f"s_cmp_eq_u32 s{g.sCnt}, 0")
            if p == D - 1: k(f"s_cbranch_scc0 {lp}")
            else: k(f"s_cbranch_scc1 {done}")
    k(f"{done}:")

def gemm_reduce(k, g, sWave):
    t = g.t
    k(f"v_add_u32 v{t[0]}, s{g.sM}, v{g.l16}")
    for j in range(1, 4):
        k(f"s_xor_b32 s{g.sT}, s{sWave}, {j}")
        k(f"s_mul_i32 s{g.sT}, s{g.sT}, {WREG}")
        k(f"v_add_u32 v{t[j]}, s{g.sT}, v{g.l16}")
    k("s_waitcnt vmcnt(0)")
    for j in range(1, 4):
        for db in range(5):
            k(f"ds_write_b128 v{t[0]}, {vr(g.acc[j][db],4)} offset:{((j-1)*5+db)*1024}")
    k("s_waitcnt lgkmcnt(0)")
    k("s_barrier")
    for j in range(1, 4):
        for db in range(5):
            k(f"ds_read_b128 {vr(g.acc[j][db],4)}, v{t[j]} offset:{((j-1)*5+db)*1024}")
    for j in range(1, 4):
        k(f"s_waitcnt lgkmcnt({10-5*(j-1)})")
        for db in range(5):
            for r in range(4):
                k(f"v_add_f32 v{g.acc[0][db]+r}, v{g.acc[0][db]+r}, v{g.acc[j][db]+r}")

def pack_pairs(k, g, dst):
    for db in range(5):
        a = g.acc[0][db]
        k(f"v_cvt_pk_bf16_f32 v{dst+2*db}, v{a}, v{a+1}")
        k(f"v_cvt_pk_bf16_f32 v{dst+2*db+1}, v{a+2}, v{a+3}")
    for q in range(2):
        k(f"v_permlane16_swap_b32 v{dst+4*q}, v{dst+4*q+2}")
        k(f"v_permlane16_swap_b32 v{dst+4*q+1}, v{dst+4*q+3}")

def mlp1_map(k, g, sId, sFt, sDt, sRot):
    k(f"""
    s_bfe_u32 s{g.sT}, s{sId}, 0x20001
    s_mul_i32 s{g.sT}, s{g.sT}, 27
    s_lshr_b32 s{g.sT2}, s{sId}, 3
    s_add_u32 s{g.sT}, s{g.sT}, s{g.sT2}
    s_lshr_b32 s{sFt}, s{g.sT}, 2
    s_and_b32 s{sDt}, s{g.sT}, 3
    s_lshl_b32 s{sRot}, s{sDt}, 2
    s_add_u32 s{sRot}, s{sRot}, s{sFt}
    s_and_b32 s{sRot}, s{sRot}, 15
    s_and_b32 s{g.sT2}, s{sId}, 1
    s_lshl_b32 s{g.sT2}, s{g.sT2}, 2
    s_add_u32 s{sDt}, s{sDt}, s{g.sT2}
    """)

def tile2_map(k, sId, sSt, sDt, sT):
    k(f"""
    s_bfe_u32 s{sSt}, s{sId}, 0x20001
    s_lshl_b32 s{sSt}, s{sSt}, 3
    s_lshr_b32 s{sT}, s{sId}, 5
    s_add_u32 s{sSt}, s{sSt}, s{sT}
    s_bfe_u32 s{sDt}, s{sId}, 0x20003
    s_and_b32 s{sT}, s{sId}, 1
    s_lshl_b32 s{sT}, s{sT}, 2
    s_add_u32 s{sDt}, s{sDt}, s{sT}
    """)

def gen_mlp1(k, g, lane, sWave, sId, sW1, sHT, sU, sB1, sa, va, sc=""):
    sFt = sa(); sDt = sa(); sRot = sa()
    bias = va(4, 2); pk = va(10, 4)
    t = g.t
    mlp1_map(k, g, sId, sFt, sDt, sRot)
    k(f"""
    v_lshrrev_b32 v{t[3]}, 4, v{lane}
    v_lshlrev_b32 v{t[3]}, 3, v{t[3]}
    s_lshl_b32 s{g.sT}, s{sFt}, 7
    s_lshl_b32 s{g.sT2}, s{sWave}, 5
    s_add_u32 s{g.sT}, s{g.sT}, s{g.sT2}
    buffer_load_dwordx2 {vr(pk,2)}, v{t[3]}, {sr(sB1,4)}, s{g.sT} offen
    """)
    gemm_main(k, g, lane, sWave, sW1, sHT, F * 2, 16, sFt, sDt, sRot, False)
    k.stamp(2)
    k(f"""
    v_lshlrev_b32 v{bias}, 16, v{pk}
    v_and_b32 v{bias+1}, 0xffff0000, v{pk}
    v_lshlrev_b32 v{bias+2}, 16, v{pk+1}
    v_and_b32 v{bias+3}, 0xffff0000, v{pk+1}
    """)
    gemm_reduce(k, g, sWave)
    c0 = -2.0 * math.sqrt(2.0 / math.pi) * math.log2(math.e)
    k(f"v_mov_b32 v{t[4]}, {f32(c0):#x}")
    k(f"s_mov_b32 s{g.sT}, {f32(c0*0.044715):#x}")
    for db in range(5):
        a = g.acc[0][db]; e = g.acc[1][db]
        for r in range(4): k(f"v_add_f32 v{a+r}, v{a+r}, v{bias+r}")
        for r in range(4): k(f"v_mul_f32 v{e+r}, v{a+r}, v{a+r}")
        for r in range(4): k(f"v_fma_f32 v{e+r}, v{e+r}, s{g.sT}, v{t[4]}")
        for r in range(4): k(f"v_mul_f32 v{e+r}, v{e+r}, v{a+r}")
        for r in range(4): k(f"v_exp_f32 v{e+r}, v{e+r}")
        for r in range(4): k(f"v_add_f32 v{e+r}, 1.0, v{e+r}")
        for r in range(4): k(f"v_rcp_f32 v{e+r}, v{e+r}")
        for r in range(4): k(f"v_mul_f32 v{a+r}, v{a+r}, v{e+r}")
    k(f"""
    v_lshrrev_b32 v{t[0]}, 5, v{lane}
    v_mul_u32_u24 v{t[0]}, {CH_D}, v{t[0]}
    v_and_b32 v{t[1]}, 31, v{lane}
    v_lshl_add_u32 v{t[1]}, v{t[1]}, 4, v{t[0]}
    v_and_b32 v{t[2]}, 15, v{lane}
    v_lshl_add_u32 v{t[2]}, v{t[2]}, 4, v{t[0]}
    v_bfe_u32 v{t[3]}, v{lane}, 4, 1
    v_lshl_add_u32 v{t[2]}, v{t[3]}, 3, v{t[2]}
    s_lshl_b32 s{g.sT}, s{sFt}, 2
    s_add_u32 s{g.sT}, s{g.sT}, s{sWave}
    s_mul_i32 s{g.sT}, s{g.sT}, {2*CH_D}
    s_mul_i32 s{g.sT2}, s{sDt}, 1280
    s_add_u32 s{g.sT}, s{g.sT}, s{g.sT2}
    """)
    pack_pairs(k, g, pk)
    k(f"buffer_store_dwordx4 {vr(pk,4)}, v{t[1]}, {sr(sU,4)}, s{g.sT} offen {sc}")
    k(f"buffer_store_dwordx4 {vr(pk+4,4)}, v{t[1]}, {sr(sU,4)}, s{g.sT} offen offset:512 {sc}")
    k(f"buffer_store_dwordx2 {vr(pk+8,2)}, v{t[2]}, {sr(sU,4)}, s{g.sT} offen offset:1024 {sc}")
    return sDt

def gen_mlp2(k, g, lane, sWave, sId, sW2, sU, sY, sa, va):
    sSt = sa(); sDt = sa(); sRot = sa()
    tile2_map(k, sId, sSt, sDt, g.sT)
    k(f"""
    s_and_b32 s{sRot}, s{sDt}, 3
    s_mul_i32 s{sRot}, s{sRot}, 3
    s_and_b32 s{g.sT}, s{sSt}, 3
    s_add_u32 s{sRot}, s{sRot}, s{g.sT}
    """)
    gemm_main(k, g, lane, sWave, sW2, sU, S * 2, 14, sSt, sDt, sRot, True)
    k.stamp(5)
    gemm_reduce(k, g, sWave)
    k(f"""
    s_lshl_b32 s{g.sT}, s{sSt}, 3
    s_add_u32 s{g.sT}, s{g.sT}, s{sDt}
    s_lshl_b32 s{g.sT}, s{g.sT}, 2
    s_add_u32 s{g.sT}, s{g.sT}, s{sWave}
    s_mul_i32 s{g.sT}, s{g.sT}, 5120
    s_add_u32 s{g.sT2}, s{g.sT}, 4096
    """)
    for db in range(5):
        k(f"buffer_store_dwordx4 {vr(g.acc[0][db],4)}, v{g.l16}, {sr(sY,4)}, s{g.sT if db < 4 else g.sT2} offen offset:{(db%4)*1024}")

WO_WREG = 25600
WO_LDS = 4 * WO_WREG
def gen_wo():
    k = Kern("wo_kernel")
    va = Alloc(1, 256); sa = Alloc(40, 64)
    sX, sWo, sO, sY, sB2, sOut = 16, 20, 24, 28, 32, 36
    lane = va(); sWave = sa(); sSt = sa(); sDt = sa()
    class G: pass
    g = G()
    g.acc = [[va(4, 4) for _ in range(5)] for _ in range(4)]
    W = [va(4, 2) for _ in range(5)]
    C = [[va(4, 2) for _ in range(4)] for _ in range(5)]
    Y = [va(4, 4) for _ in range(5)]
    X = va(10, 4); pk = va(10, 4); b2 = va()
    oT = [va() for _ in range(5)]; oC = [va() for _ in range(4)]; aW = va(); oX = va(); oX2 = va()
    g.t = t = [va() for _ in range(6)]; g.l16 = va()
    g.sT = sa(); g.sT2 = sa(); g.sM = sa(); sTo = sa(); sCo = sa(); sXo = sa()
    end = k.label("end")
    k.stamp(0); k.stamp(1, True)
    k(f"""
    s_cmp_ge_u32 s2, 256
    s_cbranch_scc1 {end}
    s_load_dwordx2 s[4:5], s[0:1], {KA_X}
    s_load_dwordx2 s[6:7], s[0:1], {KA_WO}
    s_load_dwordx4 s[8:11], s[0:1], {KA_B2}
    s_load_dwordx2 s[12:13], s[0:1], {KA_WS}
    v_lshrrev_b32 v{lane}, 6, v0
    s_nop 0
    v_readfirstlane_b32 s{sWave}, v{lane}
    v_and_b32 v{lane}, 63, v0
    """)
    tile2_map(k, 2, sSt, sDt, g.sT)
    k(f"s_mul_i32 s{g.sM}, s{sWave}, {WO_WREG}")
    k(f"v_lshlrev_b32 v{g.l16}, 4, v{lane}")
    for a in range(5):
        k(f"""
        v_add_u32 v{t[0]}, {64*a}, v{lane}
        v_mul_u32_u24 v{t[1]}, 6554, v{t[0]}
        v_lshrrev_b32 v{t[1]}, 16, v{t[1]}
        v_mul_u32_u24 v{t[2]}, {1280-160}, v{t[1]}
        v_lshl_add_u32 v{oT[a]}, v{t[0]}, 4, v{t[2]}
        """)
        if a % 4: k(f"v_subrev_u32 v{oT[a]}, {(a%4)*1024}, v{oT[a]}")
    k(f"""
    v_lshrrev_b32 v{t[0]}, 4, v{lane}        ; g
    v_and_b32 v{t[1]}, 15, v{lane}
    v_lshlrev_b32 v{t[2]}, 15, v{t[0]}
    v_lshl_add_u32 v{t[2]}, v{t[1]}, 4, v{t[2]}
    s_lshl_b32 s{g.sT}, s{sWave}, 8
    v_add_u32 v{oC[0]}, s{g.sT}, v{t[2]}
    v_xor_b32 v{oC[1]}, 0x100, v{oC[0]}
    v_xor_b32 v{oC[2]}, 0x200, v{oC[0]}
    v_xor_b32 v{oC[3]}, 0x300, v{oC[0]}
    v_bfe_u32 v{t[2]}, v{lane}, 2, 2
    v_lshl_add_u32 v{t[2]}, v{t[0]}, 3, v{t[2]}
    v_mul_u32_u24 v{aW}, 160, v{t[2]}
    v_and_b32 v{t[2]}, 3, v{lane}
    v_lshl_add_u32 v{aW}, v{t[2]}, 3, v{aW}
    v_add_u32 v{aW}, s{g.sM}, v{aW}
    v_mul_u32_u24 v{oX}, 1280, v{t[1]}
    v_lshl_add_u32 v{oX2}, v{t[0]}, 3, v{oX}
    v_bfe_u32 v{t[2]}, v{lane}, 4, 1
    v_lshl_add_u32 v{oX}, v{t[2]}, 5, v{oX}
    v_lshrrev_b32 v{t[2]}, 5, v{lane}
    v_lshl_add_u32 v{oX}, v{t[2]}, 4, v{oX}
    v_lshlrev_b32 v{t[3]}, 1, v{t[1]}
    s_mul_i32 s{sTo}, s{sWave}, {32*1280}
    s_mul_i32 s{g.sT}, s{sDt}, 160
    s_add_u32 s{sTo}, s{sTo}, s{g.sT}
    s_lshl_b32 s{sCo}, s{sWave}, 17
    s_lshl_b32 s{g.sT2}, s{sSt}, 10
    s_add_u32 s{sCo}, s{sCo}, s{g.sT2}
    s_lshl_b32 s{sXo}, s{sSt}, 2
    s_add_u32 s{sXo}, s{sXo}, s{sWave}
    s_lshl_b32 s{g.sT2}, s{sXo}, 5
    s_mul_i32 s{sXo}, s{sXo}, {16*1280}
    s_add_u32 s{sXo}, s{sXo}, s{g.sT}
    s_waitcnt lgkmcnt(0)
    """)
    srd(k, sWo, 6, 0, D * D * 2)
    srd(k, sO, 12, O_OFF, O_SZ)
    for i in range(5):
        k(f"s_add_u32 m0, s{g.sM}, {i*5120}")
        for j in range(4):
            k(f"buffer_load_dwordx4 {vr(C[i][j],4)}, v{oC[j]}, {sr(sO,4)}, s{sCo} offen")
        for a in range(4):
            k(f"buffer_load_dwordx4 v{oT[a]}, {sr(sWo,4)}, s{sTo} offen offset:{a*1024} lds")
        k(f"s_add_u32 m0, s{g.sM}, {i*5120+4096}")
        k(f"s_add_u32 s{sCo}, s{sCo}, {16*CH_S}")
        k(f"buffer_load_dwordx4 v{oT[4]}, {sr(sWo,4)}, s{sTo} offen lds")
        k(f"s_add_u32 s{sTo}, s{sTo}, {128*1280}")
    srd(k, sX, 4, 0, S * D * 2)
    srd(k, sY, 12, Y_OFF, Y_SZ)
    srd(k, sB2, 8, 0, S * 2)
    srd(k, sOut, 10, 0, S * D * 2)
    k(f"""
    v_mov_b32 v{b2}, 0
    s_lshl_b32 s{g.sT}, s{sSt}, 3
    s_add_u32 s{g.sT}, s{g.sT}, s{sDt}
    s_lshl_b32 s{g.sT}, s{g.sT}, 2
    s_add_u32 s{g.sT}, s{g.sT}, s{sWave}
    s_mul_i32 s{g.sT}, s{g.sT}, 5120
    s_add_u32 s{sCo}, s{g.sT}, 4096
    buffer_load_short_d16_hi v{b2}, v{t[3]}, {sr(sB2,4)}, s{g.sT2} offen
    """)
    for db in range(5):
        k(f"buffer_load_dwordx4 {vr(Y[db],4)}, v{g.l16}, {sr(sY,4)}, s{g.sT if db < 4 else sCo} offen offset:{(db%4)*1024}")
    for db in range(5):
        k(f"buffer_load_dwordx2 {vr(X+2*db,2)}, v{oX2}, {sr(sX,4)}, s{sXo} offen offset:{db*32}")
    NX = 11
    for i in range(5):
        k(f"s_waitcnt vmcnt({9*(4-i)+NX})")
        for db in range(5):
            k(f"ds_read_b64_tr_b16 {vr(W[db],2)}, v{aW} offset:{i*5120+db*32}")
            k(f"ds_read_b64_tr_b16 {vr(W[db]+2,2)}, v{aW} offset:{i*5120+db*32+640}")
        for db in range(5):
            k(f"s_waitcnt lgkmcnt({8-2*db})")
            for j in range(4):
                c = "0" if i == 0 else vr(g.acc[j][db], 4)
                k(f"v_mfma_f32_16x16x32_bf16 {vr(g.acc[j][db],4)}, {vr(W[db],4)}, {vr(C[i][j],4)}, {c}")
    k.stamp(2)
    global WREG
    save = WREG; WREG = WO_WREG
    gemm_reduce(k, g, sWave)
    WREG = save
    for db in range(5):
        a = g.acc[0][db]; e = g.acc[1][db]
        k(f"v_lshlrev_b32 v{e}, 16, v{X+2*db}")
        k(f"v_and_b32 v{e+1}, 0xffff0000, v{X+2*db}")
        k(f"v_lshlrev_b32 v{e+2}, 16, v{X+2*db+1}")
        k(f"v_and_b32 v{e+3}, 0xffff0000, v{X+2*db+1}")
        for r in range(4): k(f"v_add_f32 v{Y[db]+r}, v{Y[db]+r}, v{b2}")
        for r in range(4): k(f"v_add_f32 v{a+r}, v{a+r}, v{e+r}")
        for r in range(4): k(f"v_add_f32 v{a+r}, v{a+r}, v{Y[db]+r}")
    pack_pairs(k, g, pk)
    k(f"buffer_store_dwordx4 {vr(pk,4)}, v{oX}, {sr(sOut,4)}, s{sXo} offen")
    k(f"buffer_store_dwordx4 {vr(pk+4,4)}, v{oX}, {sr(sOut,4)}, s{sXo} offen offset:64")
    k(f"buffer_store_dwordx2 {vr(pk+8,2)}, v{oX2}, {sr(sOut,4)}, s{sXo} offen offset:128")
    k.stamp(3)
    k.dump(12, sWave, 3)
    k(f"{end}:")
    k("s_endpgm")
    return k, va.p
```

```python
from asm import *
from layout import *
import struct, math

def f32(x): return struct.unpack("<I", struct.pack("<f", x))[0]

STG = 32768
K1_STAT = 4 * STG
K1_LDS = K1_STAT + 2560
QSCALE = math.log2(math.e) / math.sqrt(DH)
K1_WGS = 240
XP = os.environ.get('XP', '')

def pi31(k, dst, src, t):
    k(f"""
    v_and_b32 v{dst}, 0x13, v{src}
    v_bfe_u32 v{t}, v{src}, 2, 1
    v_lshl_add_u32 v{dst}, v{t}, 3, v{dst}
    v_bfe_u32 v{t}, v{src}, 3, 1
    v_lshl_add_u32 v{dst}, v{t}, 2, v{dst}
    """)

def gen_qkv(prefetch=True, LA=2):
    k = Kern("qkv_kernel")
    va = Alloc(1, 168); sa = Alloc(36, 64)
    sX, sW, sOut, sHT = 12, 16, 20, 24
    sP1, sP2 = 28, 32
    lane = va()
    sWave = sa(); sT = sa(); sT2 = sa(); sSt = sa(); sNc = sa(); sGrp = sa(); sJ = sa(); sXcd = sa(); sL = sa(); sHg = sa()
    end = k.label("end"); loader = k.label("loader"); vpath = k.label("vpath"); statw = k.label("stat"); hpart = k.label("hpart")
    k.stamp(0); k.stamp(1, True)
    k(f"""
    s_cmp_ge_u32 s2, {K1_WGS}
    s_cbranch_scc1 {end}
    s_load_dwordx4 s[4:7], s[0:1], {KA_X}
    s_load_dwordx2 s[8:9], s[0:1], {KA_WS}
    s_load_dwordx2 s[10:11], s[0:1], {KA_W1}
    s_load_dwordx2 s[34:35], s[0:1], {KA_W2}
    v_lshrrev_b32 v{lane}, 6, v0
    s_and_b32 s{sXcd}, s2, 7
    v_readfirstlane_b32 s{sWave}, v{lane}
    v_and_b32 v{lane}, 63, v0
    s_lshr_b32 s{sJ}, s2, 3
    s_mul_i32 s{sT}, s{sJ}, 205
    s_lshr_b32 s{sT}, s{sT}, 10              ; j / 5
    s_mul_i32 s{sT2}, s{sT}, 5
    s_sub_u32 s{sNc}, s{sJ}, s{sT2}
    s_mul_i32 s{sT2}, s{sXcd}, 6
    s_add_u32 s{sT}, s{sT}, s{sT2}           ; unit 0..47
    s_lshr_b32 s{sGrp}, s{sT}, 4             ; 0 Q, 1 K, 2 V
    s_and_b32 s{sSt}, s{sT}, 15
    s_and_b32 s{sL}, s{sWave}, 3
    """)
    p0, q0 = va.p, sa.p
    oA = [va() for _ in range(4)]; oB = [va() for _ in range(4)]
    tm = [va() for _ in range(4)]
    k(f"""
    v_lshrrev_b32 v{tm[0]}, 3, v{lane}
    s_lshl_b32 s{sT}, s{sL}, 5
    v_add_u32 v{tm[0]}, s{sT}, v{tm[0]}
    v_and_b32 v{tm[1]}, 7, v{lane}
    v_lshrrev_b32 v{tm[2]}, 4, v{lane}
    v_xor_b32 v{tm[1]}, v{tm[1]}, v{tm[2]}
    v_mul_u32_u24 v{tm[0]}, 1280, v{tm[0]}
    """)
    for j in range(4):
        k(f"v_xor_b32 v{tm[3]}, {4*(j&1)}, v{tm[1]}")
        k(f"v_lshl_add_u32 v{oA[j]}, v{tm[3]}, 4, v{tm[0]}")
        if j: k(f"v_add_u32 v{oA[j]}, {j*(8*1280-1024)}, v{oA[j]}")
    k(f"""
    s_lshl_b32 s{sT}, s{sL}, 4
    v_add_u32 v{tm[0]}, s{sT}, v{tm[2]}
    v_mul_u32_u24 v{tm[0]}, 3840, v{tm[0]}
    v_and_b32 v{tm[1]}, 15, v{lane}
    v_lshlrev_b32 v{tm[3]}, 2, v{tm[2]}
    v_xor_b32 v{tm[1]}, v{tm[1]}, v{tm[3]}
    v_lshl_add_u32 v{oB[0]}, v{tm[1]}, 4, v{tm[0]}
    """)
    for j in range(1, 4):
        k(f"v_add_u32 v{oB[j]}, {j*(4*3840-1024)}, v{oB[0]}")
    sKs = sa(); sXo = sa(); sWo = sa(); sA = sa(); sB = sa(); sM = sa()
    k(f"""
    s_mul_i32 s{sXo}, s{sSt}, {128*1280}
    s_mul_i32 s{sHg}, s{sGrp}, 5
    s_add_u32 s{sHg}, s{sHg}, s{sNc}
    s_lshl_b32 s{sWo}, s{sHg}, 8
    s_add_u32 s{sT}, s{sNc}, s{sSt}
    s_mul_i32 s{sT2}, s{sT}, 205
    s_lshr_b32 s{sT2}, s{sT2}, 10
    s_mul_i32 s{sT2}, s{sT2}, 5
    s_sub_u32 s{sKs}, s{sT}, s{sT2}
    s_lshl_b32 s{sKs}, s{sKs}, 1
    s_lshl_b32 s{sM}, s{sL}, 12
    s_waitcnt lgkmcnt(0)
    """)
    srd(k, sX, 4, 0, S * D * 2)
    srd(k, sW, 6, 0, D * 3 * D * 2)
    k(f"s_lshr_b32 s{sT}, s{sWave}, 2")
    k(f"s_cmp_eq_u32 s{sT}, 1")
    k(f"s_cbranch_scc1 {loader}")
    srd(k, sOut, 8, 0, V_OFF + V_SZ)
    srd(k, sHT, 8, HT_OFF, HT_SZ)
    k(f"s_cmp_eq_u32 s{sT}, 2")
    k(f"s_cbranch_scc1 {statw}")
    pL, qL = va.p, sa.p
    va.p, sa.p = p0, q0
    acc = [[va(16, 4) for _ in range(2)] for _ in range(2)]
    FX = [[va(4, 2) for _ in range(2)] for _ in range(2)]
    FW = [[va(4, 2) for _ in range(2)] for _ in range(2)]
    aX = [va() for _ in range(4)]
    aW = [va() for _ in range(2)]
    csa = va(4, 4); sel = va(4, 2)
    t = [va() for _ in range(6)]
    hf = va(); l31 = va(); lp31 = va()
    ex = va(40, 4)
    sWm = sa(); sWn = sa(); sCnt = sa(); sWb = [sa(), sa()]
    sScale = sa(); sSo = [sa(), sa()]; sHS = sa()
    k(f"""
    s_lshr_b32 s{sWm}, s{sWave}, 1
    s_and_b32 s{sWn}, s{sWave}, 1
    s_lshl_b32 s{sT}, s{sWn}, 1
    s_add_u32 s{sWb[0]}, s{sT}, s{sWm}
    s_xor_b32 s{sWb[1]}, s{sWb[0]}, 1
    v_lshrrev_b32 v{hf}, 5, v{lane}
    v_and_b32 v{l31}, 31, v{lane}
    """)
    pi31(k, lp31, l31, t[0])
    k(f"""
    v_bfe_u32 v{t[0]}, v{lp31}, 1, 3
    v_xor_b32 v{t[0]}, v{t[0]}, v{hf}
    v_lshlrev_b32 v{t[0]}, 4, v{t[0]}
    v_lshl_add_u32 v{t[0]}, v{lp31}, 7, v{t[0]}
    s_lshl_b32 s{sT}, s{sWm}, 13
    v_add_u32 v{t[0]}, s{sT}, v{t[0]}
    """)
    for ks in range(4):
        k(f"v_xor_b32 v{aX[ks]}, {ks*32}, v{t[0]}")
    k(f"""
    v_bfe_u32 v{t[0]}, v{lane}, 2, 2         ; r
    v_lshl_add_u32 v{t[1]}, v{hf}, 3, v{t[0]}
    v_lshlrev_b32 v{t[1]}, 8, v{t[1]}
    v_xor_b32 v{t[0]}, s{sWb[0]}, v{t[0]}
    v_lshl_add_u32 v{t[1]}, v{t[0]}, 6, v{t[1]}
    v_bfe_u32 v{t[0]}, v{lane}, 4, 1
    v_lshl_add_u32 v{t[1]}, v{t[0]}, 5, v{t[1]}
    v_and_b32 v{t[0]}, 1, v{lane}
    v_lshl_add_u32 v{t[1]}, v{t[0]}, 4, v{t[1]}
    v_bfe_u32 v{t[0]}, v{lane}, 1, 1
    v_lshl_add_u32 v{t[1]}, v{t[0]}, 3, v{t[1]}
    v_add_u32 v{aW[0]}, 0x4000, v{t[1]}
    v_xor_b32 v{aW[1]}, 64, v{aW[0]}
    v_lshrrev_b32 v{t[0]}, 4, v{lane}
    v_xor_b32 v{t[0]}, v{t[0]}, v{lane}
    v_and_b32 v{t[0]}, 1, v{t[0]}
    v_add_u32 v{t[0]}, -1, v{t[0]}
    v_and_b32 v{sel}, 0x3f803f80, v{t[0]}
    v_mov_b32 v{sel+1}, v{sel}
    v_mov_b32 v{sel+2}, v{sel}
    v_mov_b32 v{sel+3}, v{sel}
    """)
    for r in range(4):
        k(f"v_mov_b32 v{csa+r}, 0")
    for jx in range(2):
        for jw in range(2):
            for r in range(16):
                k(f"v_mov_b32 v{acc[jx][jw]+r}, 0")
    for j in range(2):
        for r in range(4):
            k(f"v_mov_b32 v{FX[1][j]+r}, 0")
            k(f"v_mov_b32 v{FW[1][j]+r}, 0")
    k(f"s_mov_b32 s{sCnt}, 5")
    k(f"s_cmp_eq_u32 s{sGrp}, 2")
    k(f"s_cbranch_scc1 {vpath}")

    def reads(buf, par, ks):
        o = par * STG
        rs = []
        for j in range(2):
            rs.append(f"ds_read_b64_tr_b16 {vr(FW[buf][j],2)}, v{aW[j]} offset:{o+ks*4096}")
            rs.append(f"ds_read_b64_tr_b16 {vr(FW[buf][j]+2,2)}, v{aW[j]} offset:{o+ks*4096+1024}")
            rs.append(f"ds_read_b128 {vr(FX[buf][j],4)}, v{aX[ks]} offset:{o+j*4096}")
        return rs
    def comp(buf, vmode, rs):
        ms = []
        for jx, jw in ((0, 0), (1, 0), (0, 1), (1, 1)):
            a, b = (FX[buf][jx], FW[buf][jw]) if vmode else (FW[buf][jw], FX[buf][jx])
            ms.append(f"v_mfma_f32_32x32x16_bf16 {vr(acc[jx][jw],16)}, {vr(a,4)}, {vr(b,4)}, {vr(acc[jx][jw],16)}")
        ms.append(f"v_mfma_f32_16x16x32_bf16 {vr(csa,4)}, {vr(sel,4)}, {vr(FW[buf][0],4)}, {vr(csa,4)}")
        rs = list(rs)
        if 'l' in XP: rs = []
        for i in range(5):
            if not ('m' in XP or ('c' in XP and i == 4)): k(ms[i])
            for _ in range(3):
                if rs: k(rs.pop(0))
    def mainloop(vmode):
        lp = k.label("loop")
        k.stamp(2)
        k(".p2align 6")
        k(f"{lp}:")
        for par in range(2):
            k("s_barrier")
            for ks in range(4):
                comp((ks + 1) % 2, vmode, reads(ks % 2, par, ks))
                k("s_waitcnt lgkmcnt(0)")
        for ks in range(4):
            k(f"v_xor_b32 v{aX[ks]}, 0x10000, v{aX[ks]}")
        for j in range(2):
            k(f"v_xor_b32 v{aW[j]}, 0x10000, v{aW[j]}")
        k(f"s_sub_u32 s{sCnt}, s{sCnt}, 1")
        k(f"s_cmp_lg_u32 s{sCnt}, 0")
        k(f"s_cbranch_scc1 {lp}")
        k.stamp(3)
        comp(1, vmode, [])
        k(f"""
        v_and_b32 v{t[0]}, 15, v{lane}
        v_lshlrev_b32 v{t[0]}, 2, v{t[0]}
        s_lshl_b32 s{sT2}, s{sWb[0]}, 7
        s_add_u32 s{sT2}, s{sT2}, {K1_STAT+1024}
        v_add_u32 v{t[0]}, s{sT2}, v{t[0]}
        """)
    def cs_write():
        k(f"ds_write_b32 v{t[0]}, v{csa}")
        k(f"ds_write_b32 v{t[0]}, v{csa+1} offset:64")
        k("s_waitcnt lgkmcnt(0)")
        k.stamp(4)
        k("s_barrier")
        k.stamp(5)
    pk = ex + 32
    mainloop(False)
    ad = aX[0]
    mean, rstd = [FX[0][0], FX[0][0] + 1], [FX[0][1], FX[0][1] + 1]
    k(f"""
    s_cmp_eq_u32 s{sGrp}, 0
    s_cselect_b32 s{sScale}, {f32(QSCALE):#x}, 1.0
    v_lshlrev_b32 v{ad}, 15, v{hf}
    v_lshl_add_u32 v{ad}, v{lp31}, 4, v{ad}
    s_lshl_b32 s{sT}, s{sSt}, 11
    s_lshl_b32 s{sT2}, s{sWm}, 10
    s_add_u32 s{sT}, s{sT}, s{sT2}
    s_lshl_b32 s{sT2}, s{sHg}, 19
    s_add_u32 s{sT}, s{sT}, s{sT2}
    s_lshl_b32 s{sT2}, s{sWb[0]}, 17
    s_add_u32 s{sSo[0]}, s{sT}, s{sT2}
    s_lshl_b32 s{sT2}, s{sWb[1]}, 17
    s_add_u32 s{sSo[1]}, s{sT}, s{sT2}
    v_add_u32 v{aX[1]}, 0x10000, v{ad}
    s_lshl_b32 s{sT}, s{sWm}, 8
    s_add_u32 s{sT}, s{sT}, {K1_STAT}
    v_lshlrev_b32 v{t[4]}, 2, v{lp31}
    v_add_u32 v{t[4]}, s{sT}, v{t[4]}
    v_lshlrev_b32 v{t[2]}, 4, v{hf}
    v_add_u32 v{t[2]}, {K1_STAT+1024:#x}, v{t[2]}
    s_lshl_b32 s{sT}, s{sWb[0]}, 7
    v_add_u32 v{t[1]}, s{sT}, v{t[2]}
    s_lshl_b32 s{sT}, s{sWb[1]}, 7
    v_add_u32 v{t[2]}, s{sT}, v{t[2]}
    """)
    cs_write()
    for js in range(2):
        k(f"ds_read_b32 v{mean[js]}, v{t[4]} offset:{js*128}")
        k(f"ds_read_b32 v{rstd[js]}, v{t[4]} offset:{512+js*128}")
    for jn in range(2):
        for m in range(4):
            k(f"ds_read_b128 {vr(ex+(jn*4+m)*4,4)}, v{t[1+jn]} offset:{m*32}")
    k("s_waitcnt lgkmcnt(8)")
    for js in range(2):
        k(f"v_mul_f32 v{rstd[js]}, s{sScale}, v{rstd[js]}")
    n = 0
    for jn in range(2):
        for i in range(2):
            k(f"s_waitcnt lgkmcnt({6 - 4*jn - 2*i})")
            for js in range(2):
                a = acc[js][jn] + 8 * i
                for e in range(8):
                    k(f"v_fma_f32 v{a+e}, -v{mean[js]}, v{ex+jn*16+8*i+e}, v{a+e}")
                for e in range(8):
                    k(f"v_mul_f32 v{a+e}, v{a+e}, v{rstd[js]}")
                p = pk + 4 * (n % 2); n += 1
                for e in range(4):
                    k(f"v_cvt_pk_bf16_f32 v{p+e}, v{a+2*e}, v{a+2*e+1}")
                k(f"buffer_store_dwordx4 {vr(p,4)}, v{aX[i]}, {sr(sOut,4)}, s{sSo[jn]} offen offset:{js*512}")
    k.stamp(6)
    k.dump(8, sWave, 0)
    k("s_endpgm")
    k(f"{vpath}:")
    mainloop(True)
    for js in range(2):
        k(f"""
        s_lshl_b32 s{sT}, s{sSt}, 2
        s_lshl_b32 s{sT2}, s{sWm}, 1
        s_add_u32 s{sT}, s{sT}, s{sT2}
        s_add_u32 s{sT}, s{sT}, {js}
        s_mul_i32 s{sT}, s{sT}, {VREC}
        s_add_u32 s{sSo[js]}, s{sT}, {V_OFF}
        """)
    k(f"s_mov_b32 s{sHS}, {V_HS}")
    for jn in range(2):
        a = aX[jn]; g, hd = FX[0][0], FX[0][0] + 1
        k(f"""
        s_lshl_b32 s{sT}, s{sNc}, 7
        s_lshl_b32 s{sT2}, s{sWb[jn]}, 5
        s_add_u32 s{sT}, s{sT}, s{sT2}
        v_add_u32 v{g}, s{sT}, v{lp31}
        v_mul_u32_u24 v{hd}, 3277, v{g}
        v_lshrrev_b32 v{hd}, 16, v{hd}
        v_mul_u32_u24 v{a}, 20, v{hd}
        v_sub_u32 v{g}, v{g}, v{a}
        v_mul_lo_u32 v{a}, v{hd}, s{sHS}
        v_lshl_add_u32 v{a}, v{g}, 4, v{a}
        v_mul_u32_u24 v{g}, 336, v{hf}
        v_add_u32 v{a}, v{a}, v{g}
        s_lshl_b32 s{sT}, s{sWb[jn]}, 7
        s_add_u32 s{sT}, s{sT}, {K1_STAT+1024}
        v_lshlrev_b32 v{t[1+jn]}, 2, v{l31}
        v_add_u32 v{t[1+jn]}, s{sT}, v{t[1+jn]}
        """)
    k(f"""
    s_lshl_b32 s{sT}, s{sWm}, 8
    s_add_u32 s{sT}, s{sT}, {K1_STAT}
    v_lshlrev_b32 v{t[4]}, 5, v{hf}
    v_add_u32 v{t[4]}, s{sT}, v{t[4]}
    """)
    cs_write()
    cs = [FX[0][0], FX[0][0] + 1]
    for jn in range(2):
        k(f"ds_read_b32 v{cs[jn]}, v{t[1+jn]}")
    n = 0
    for js in range(2):
        for i in range(2):
            for q in range(2):
                k(f"ds_read_b128 {vr(ex+i*16+q*4,4)}, v{t[4]} offset:{js*128+i*64+q*16}")
                k(f"ds_read_b128 {vr(ex+i*16+8+q*4,4)}, v{t[4]} offset:{512+js*128+i*64+q*16}")
        for i in range(2):
            k(f"s_waitcnt lgkmcnt({4-4*i})")
            for jn in range(2):
                a = acc[js][jn] + 8 * i
                for e in range(8):
                    k(f"v_fma_f32 v{a+e}, -v{ex+i*16+e}, v{cs[jn]}, v{a+e}")
                for e in range(8):
                    k(f"v_mul_f32 v{a+e}, v{a+e}, v{ex+i*16+8+e}")
                p = pk + 4 * (n % 2); n += 1
                for e in range(4):
                    k(f"v_cvt_pk_bf16_f32 v{p+e}, v{a+2*e}, v{a+2*e+1}")
                k(f"buffer_store_dwordx4 {vr(p,4)}, v{aX[jn]}, {sr(sOut,4)}, s{sSo[js]} offen offset:{i*672}")
    k.stamp(6)
    k.dump(8, sWave, 0)
    k("s_endpgm")
    vtop = va.p
    va.p, sa.p = pL, qL
    hx = [[va() for _ in range(8)] for _ in range(3)]
    hab = va(16, 4); hp = va(4, 4); vo = va(); vo2 = va()
    sRow = sa(); sRow2 = sa(); sRow3 = sa()
    def h_loads():
        k(f"""
        s_lshl_b32 s{sRow}, s{sSt}, 4
        s_add_u32 s{sRow}, s{sRow}, s{sHg}
        s_mul_i32 s{sRow}, s{sRow}, {8*1280}
        s_lshl_b32 s{sT}, s{sL}, 7
        s_add_u32 s{sRow}, s{sRow}, s{sT}
        s_add_u32 s{sRow2}, s{sRow}, 3840
        s_add_u32 s{sRow3}, s{sRow}, 7680
        v_lshlrev_b32 v{vo}, 1, v{lane}
        """)
        for b in range(3):
            for r in range(8):
                k(f"v_mov_b32 v{hx[b][r]}, 0")
        for b in range(3):
            for r in range(8):
                so = [sRow, sRow2, sRow3][r // 3]
                k(f"buffer_load_short_d16_hi v{hx[b][r]}, v{vo}, {sr(sX,4)}, s{so} offen offset:{(r%3)*1280+b*512}")
    NH = 24
    pS, qS = va.p, sa.p
    k(f"{statw}:")
    rd = va(16, 4); su = [va() for _ in range(4)]; sq = [va() for _ in range(4)]; lo = va(); hi = va(); aS = va()
    sCnt2 = sa()
    noh = k.label("noh")
    k(f"""
    s_cmp_lg_u32 s{sHg}, 0
    s_mov_b32 s{sHg}, 16
    s_cbranch_scc1 {noh}
    s_mov_b32 s{sHg}, 15
    """)
    h_loads()
    k(f"{noh}:")
    k(f"""
    v_lshlrev_b32 v{aS}, 4, v{lane}
    v_add_u32 v{aS}, s{sM}, v{aS}
    s_mov_b32 s{sCnt2}, 5
    """)
    for i in range(4):
        k(f"v_mov_b32 v{su[i]}, 0")
        k(f"v_mov_b32 v{sq[i]}, 0")
    lp = k.label("sloop")
    k(f"{lp}:")
    for par in range(2):
        k("s_barrier")
        for i in range(4):
            if 'r' in XP: break
            k(f"ds_read_b128 {vr(rd+4*i,4)}, v{aS} offset:{par*STG+i*1024}")
        for i in range(4):
            k(f"s_waitcnt lgkmcnt({3-i})")
            for e in range(0 if 's' in XP else 4):
                k(f"""
                v_lshlrev_b32 v{lo}, 16, v{rd+4*i+e}
                v_and_b32 v{hi}, 0xffff0000, v{rd+4*i+e}
                v_add_f32 v{su[i]}, v{su[i]}, v{lo}
                v_fmac_f32 v{sq[i]}, v{lo}, v{lo}
                v_add_f32 v{su[i]}, v{su[i]}, v{hi}
                v_fmac_f32 v{sq[i]}, v{hi}, v{hi}
                """)
    k(f"""
    v_xor_b32 v{aS}, 0x10000, v{aS}
    s_sub_u32 s{sCnt2}, s{sCnt2}, 1
    s_cmp_lg_u32 s{sCnt2}, 0
    s_cbranch_scc1 {lp}
    """)
    k.stamp(3)
    for pat in ("quad_perm:[1,0,3,2]", "quad_perm:[2,3,0,1]", "row_half_mirror"):
        for v in su + sq:
            k(f"v_add_f32_dpp v{v}, v{v}, v{v} {pat} row_mask:0xf bank_mask:0xf")
    k(f"""
    v_lshrrev_b32 v{aS}, 3, v{lane}
    v_lshlrev_b32 v{aS}, 2, v{aS}
    s_lshl_b32 s{sT}, s{sL}, 7
    s_add_u32 s{sT}, s{sT}, {K1_STAT}
    v_add_u32 v{aS}, s{sT}, v{aS}
    v_mov_b32 v{lo}, {f32(1e-5):#x}
    """)
    for i in range(4):
        k(f"v_mul_f32 v{su[i]}, {f32(1.0/D):#x}, v{su[i]}")
        k(f"v_mul_f32 v{sq[i]}, {f32(1.0/D):#x}, v{sq[i]}")
    for i in range(4):
        k(f"v_fma_f32 v{sq[i]}, -v{su[i]}, v{su[i]}, v{sq[i]}")
        k(f"v_max_f32 v{sq[i]}, 0, v{sq[i]}")
        k(f"v_add_f32 v{rd+i}, v{sq[i]}, v{lo}")
        k(f"v_rsq_f32 v{rd+i}, v{rd+i}")
    for i in range(4):
        k(f"ds_write_b32 v{aS}, v{su[i]} offset:{i*32}")
        k(f"ds_write_b32 v{aS}, v{rd+i} offset:{512+i*32}")
        k(f"v_mul_f32 v{sq[i]}, v{sq[i]}, v{rd+i}")
        k(f"v_fma_f32 v{sq[i]}, v{sq[i]}, v{rd+i}, v{lo}")
        k(f"v_rsq_f32 v{sq[i]}, v{sq[i]}")
    for i in range(4):
        k(f"v_mul_f32 v{sq[i]}, v{sq[i]}, v{rd+i}")
        k(f"v_mul_f32 v{rd+4+i}, -v{su[i]}, v{sq[i]}")
        k(f"ds_write_b32 v{aS}, v{sq[i]} offset:{1536+i*32}")
        k(f"ds_write_b32 v{aS}, v{rd+4+i} offset:{2048+i*32}")
    k("s_waitcnt lgkmcnt(0)")
    k.stamp(4)
    k("s_barrier")
    k(f"s_cmp_eq_u32 s{sHg}, 16")
    if INSTR:
        dn = k.label("dn"); k(f"s_cbranch_scc0 {dn}"); k.dump(8, sWave, 0); k("s_endpgm"); k(f"{dn}:")
    else:
        k(f"s_cbranch_scc1 {end}")
    k("s_waitcnt vmcnt(0)")
    k(f"s_branch {hpart}")
    vtop = max(vtop, va.p)
    va.p, sa.p = pS, qS
    k(f"{loader}:")
    pf = va(4, 4)
    def stage(i):
        slot = (i % 4) * STG
        k(f"""
        s_lshl_b32 s{sA}, s{sKs}, 7
        s_add_u32 s{sA}, s{sA}, s{sXo}
        s_mul_i32 s{sB}, s{sKs}, {64*3840}
        s_add_u32 m0, s{sM}, {slot}
        s_add_u32 s{sB}, s{sB}, s{sWo}
        """)
        for j in range(4):
            k(f"buffer_load_dwordx4 v{oA[j]}, {sr(sX,4)}, s{sA} offen offset:{j*1024} lds")
        k(f"""
        s_add_u32 m0, s{sM}, {slot+16384}
        s_add_u32 s{sKs}, s{sKs}, 1
        """)
        for j in range(4):
            k(f"buffer_load_dwordx4 v{oB[j]}, {sr(sW,4)}, s{sB} offen offset:{j*1024} lds")
        k(f"""
        s_cmp_eq_u32 s{sKs}, 10
        s_cselect_b32 s{sKs}, 0, s{sKs}
        """)
    NPF = 16 if prefetch else 0
    def pfetch():
        k(f"""
        s_lshl_b32 s{sA}, s2, 2
        s_add_u32 s{sA}, s{sA}, s{sL}
        s_mul_i32 s{sA}, s{sA}, 7680
        s_add_u32 s{sB}, s{sA}, 4096
        v_lshlrev_b32 v{tm[0]}, 4, v{lane}
        """)
        for P in (sP1, sP2):
            for j in range(8):
                k(f"buffer_load_dwordx4 {vr(pf,4)}, v{tm[0]}, {sr(P,4)}, s{sA if j < 4 else sB} offen offset:{(j%4)*1024}")
    stage(0); stage(1)
    srd(k, sOut, 8, 0, V_OFF + V_SZ)
    srd(k, sHT, 8, HT_OFF, HT_SZ)
    srd(k, sP1, 10, 0, S * F * 2)
    k(f"s_mov_b32 s{sP2}, s34")
    k(f"s_mov_b32 s{sP2+1}, s35")
    k(f"s_mov_b32 s{sP2+2}, {F*S*2:#x}")
    k(f"s_mov_b32 s{sP2+3}, 0x20000")
    issued = 1; extra = 0
    for i in range(10):
        k(f"s_waitcnt vmcnt({8*(issued-i)+extra})")
        k.stamp(2 + i)
        k("s_barrier")
        while issued < 9 and issued < i + LA and (issued + 1 <= 3 or issued + 1 - 4 < i):
            issued += 1
            stage(issued)
            if issued == 9:
                h_loads(); extra += NH
                if prefetch:
                    pfetch(); extra += NPF
    no1 = k.label("no1")
    k(f"""
    s_cmp_ge_u32 s2, 32
    s_cbranch_scc1 {no1}
    v_subrev_u32 v{tm[0]}, 256, v0
    v_mul_u32_u24 v{tm[0]}, 336, v{tm[0]}
    s_mul_i32 s{sA}, s2, {V_HS}
    s_add_u32 s{sA}, s{sA}, {V_OFF+320}
    v_mov_b32 v{hp}, 0x3f803f80
    v_mov_b32 v{hp+1}, 0x3f803f80
    v_mov_b32 v{hp+2}, 0x3f803f80
    v_mov_b32 v{hp+3}, 0x3f803f80
    buffer_store_dwordx4 {vr(hp,4)}, v{tm[0]}, {sr(sOut,4)}, s{sA} offen
    {no1}:
    s_barrier
    """)
    k(f"{hpart}:")
    k(f"""
    s_lshl_b32 s{sT}, s{sHg}, 5
    s_add_u32 s{sT}, s{sT}, {K1_STAT+1536}
    v_mov_b32 v{vo}, s{sT}
    ds_read_b128 {vr(hab,4)}, v{vo}
    ds_read_b128 {vr(hab+4,4)}, v{vo} offset:16
    ds_read_b128 {vr(hab+8,4)}, v{vo} offset:512
    ds_read_b128 {vr(hab+12,4)}, v{vo} offset:528
    s_lshl_b32 s{sRow}, s{sSt}, 4
    s_add_u32 s{sRow}, s{sRow}, s{sHg}
    s_mul_i32 s{sRow}, s{sRow}, {CH_D}
    s_lshl_b32 s{sT}, s{sL}, 10
    s_add_u32 s{sRow}, s{sRow}, s{sT}
    s_add_u32 s{sRow2}, s{sRow}, 4096
    s_add_u32 s{sRow3}, s{sRow}, 8192
    v_lshlrev_b32 v{vo2}, 4, v{lane}
    s_waitcnt vmcnt({NPF}) lgkmcnt(0)
    """)
    for b in range(3):
        if b == 2:
            k(f"s_cmp_ge_u32 s{sL}, 2")
            if INSTR:
                dn = k.label("dn"); k(f"s_cbranch_scc0 {dn}"); k.dump(8, sWave, 0); k("s_endpgm"); k(f"{dn}:")
            else:
                k(f"s_cbranch_scc1 {end}")
        for r in range(8):
            k(f"v_fma_f32 v{hx[b][r]}, v{hx[b][r]}, v{hab+r}, v{hab+8+r}")
        for e in range(4):
            k(f"v_cvt_pk_bf16_f32 v{hp+e}, v{hx[b][2*e]}, v{hx[b][2*e+1]}")
        k(f"buffer_store_dwordx4 {vr(hp,4)}, v{vo2}, {sr(sHT,4)}, s{[sRow,sRow2,sRow3][b]} offen")
        k("s_nop 1")
    k.dump(8, sWave, 0)
    k(f"{end}:")
    k("s_endpgm")
    return k, max(vtop, va.p)

if __name__ == "__main__":
    import sys
    k, vt = gen_qkv(LA=int(os.environ.get("LA", "2")), prefetch=bool(int(os.environ.get("PF", "1"))))
    print(f"; @launch kernel=qkv_kernel grid=({K1_WGS},1,1) block=(768,1,1) lds={K1_LDS}")
    print('.amdgcn_target "amdgcn-amd-amdhsa--gfx950"\n.text')
    print(k.text())
    print('.section .rodata,"a"')
    print(k.desc(vt))
```

```python
import sys
from asm import *
from layout import *
from qkv import gen_qkv, K1_LDS, K1_WGS
from attn import gen_attn, ATT_LDS
import mlp
from mlp import *

DEPTH = int(os.environ.get("DEPTH", "4"))
PRIO = int(os.environ.get("PRIO", "0"))

def gen_mid():
    k = Kern("mid_kernel")
    va = Alloc(1, 256); sa = Alloc(12, 64)
    lane = va(); sWave = sa(); sId = sa()
    end = k.label("end"); att = k.label("att")
    k.stamp(0); k.stamp(1, True)
    k(f"""
    s_cmp_ge_u32 s2, 512
    s_cbranch_scc1 {end}
    s_load_dwordx2 s[4:5], s[0:1], {KA_WS}
    s_load_dwordx4 s[8:11], s[0:1], {KA_W1}
    v_lshrrev_b32 v{lane}, 6, v0
    s_and_b32 s{sId}, s2, 255
    v_readfirstlane_b32 s{sWave}, v{lane}
    v_and_b32 v{lane}, 63, v0
    s_cmp_ge_u32 s2, 256
    s_cbranch_scc1 {att}
    s_cmp_ge_u32 s2, 216
    s_cbranch_scc1 {end}
    """)
    p0, q0 = va.p, sa.p
    sW1 = sa(4, 4); sHT = sa(4, 4); sU = sa(4, 4); sB1 = sa(4, 4)
    g = GemmRegs(va, sa, DEPTH)
    gemm_setup(k, g, lane, sWave)
    k("s_waitcnt lgkmcnt(0)")
    srd(k, sW1, 8, 0, S * F * 2)
    srd(k, sHT, 4, HT_OFF, HT_SZ)
    srd(k, sU, 4, U_OFF, U_SZ)
    srd(k, sB1, 10, 0, F * 2)
    gen_mlp1(k, g, lane, sWave, sId, sW1, sHT, sU, sB1, sa, va)
    k.stamp(3)
    k.dump(4, sWave, 2)
    k("s_endpgm")
    vtop = va.p
    va.p, sa.p = p0, q0
    k(f"{att}:")
    gen_attn(k, 4, sId, sWave, lane, va, sa, PRIO)
    k(f"{end}:")
    k("s_endpgm")
    return k, max(vtop, va.p)

def gen_mlp2_kernel():
    k = Kern("mlp2_kernel")
    va = Alloc(1, 256); sa = Alloc(12, 64)
    lane = va(); sWave = sa()
    end = k.label("end")
    k.stamp(0); k.stamp(1, True)
    k(f"""
    s_cmp_ge_u32 s2, 256
    s_cbranch_scc1 {end}
    s_load_dwordx2 s[4:5], s[0:1], {KA_WS}
    s_load_dwordx2 s[8:9], s[0:1], {KA_W2}
    v_lshrrev_b32 v{lane}, 6, v0
    s_nop 0
    v_readfirstlane_b32 s{sWave}, v{lane}
    v_and_b32 v{lane}, 63, v0
    """)
    sW2 = sa(4, 4); sU = sa(4, 4); sY = sa(4, 4)
    g = GemmRegs(va, sa, DEPTH)
    k("s_nop 1")
    gemm_setup(k, g, lane, sWave)
    k("s_waitcnt lgkmcnt(0)")
    srd(k, sW2, 8, 0, S * F * 2)
    srd(k, sU, 4, U_OFF, U_SZ)
    srd(k, sY, 4, Y_OFF, Y_SZ)
    gen_mlp2(k, g, lane, sWave, 2, sW2, sU, sY, sa, va)
    k.stamp(6)
    k.dump(4, sWave, 4)
    k(f"{end}:")
    k("s_endpgm")
    return k, va.p

HEADER = open("parallel_sum__mha_block__mixer_token_mlp__prompt.s.ref").read().split("; Override launch")[0]

def emit(ks):
    out = HEADER
    for k, vt, grid, blk, lds in ks:
        out += f"; @launch kernel={k.name} grid=({grid},1,1) block=({blk},1,1) lds={lds}\n"
    out += '.amdgcn_target "amdgcn-amd-amdhsa--gfx950"\n.text\n'
    for k, *_ in ks: out += k.text()
    out += '.section .rodata,"a"\n'
    for k, vt, *_ in ks: out += k.desc(vt)
    return out

if __name__ == "__main__":
    k1, v1 = gen_qkv(prefetch=False)
    k2, v2 = gen_mid()
    k2b, v2b = gen_mlp2_kernel()
    k3, v3 = gen_wo()
    sys.stdout.write(emit([(k1, v1, K1_WGS, 768, K1_LDS), (k2, v2, 512, 256, 81920), (k2b, v2b, 256, 256, MLP_LDS), (k3, v3, 256, 256, WO_LDS)]))
```
